```python
import torch

def _softmax(x, axis=-1):
    return torch.softmax(x, dim=axis)
def _gelu(x):
    return torch.nn.functional.gelu(x, approximate="tanh")
def _silu(x):
    return torch.nn.functional.silu(x)
def _sigmoid(x):
    return torch.sigmoid(x)
def _layernorm(x, axis=-1, eps=1e-5):
    m = x.mean(dim=axis, keepdim=True)
    v = x.var(dim=axis, keepdim=True, unbiased=False)
    return (x - m) / torch.sqrt(v + eps)
def _scatter_add(tgt, idx, src, axis=0):
    return tgt.clone().index_add_(axis, idx, src)
def _segment_sum(src, seg, n):
    out = torch.zeros((n,) + src.shape[1:], dtype=src.dtype)
    return out.index_add_(0, seg, src)
def _pad(x, pw):
    flat = tuple(v for pair in reversed(pw) for v in pair)
    return torch.nn.functional.pad(x, flat)

kernel_name = 'concat_heads__gqa_block_cached__gqa_block_cached__decode'

def setup_inputs():

    _w = (lambda a: (lambda t: t.to(torch.bfloat16) if t.is_floating_point() else t)(torch.as_tensor(a)))
    def _A_setup():
        B, Sq, D = 8, 1, 448
        Hq, Hkv, Sk, Dh = 16, 8, 4096, 256
        assert Hq % Hkv == 0, (Hq, Hkv)
        return {
            "x": _w((lambda *s: torch.randn(*s, dtype=torch.bfloat16) * 0.8)(B, Sq, D)),
            "k_cache": _w((lambda *s: torch.randn(*s, dtype=torch.bfloat16) * 0.8)(B, Hkv, Sk, Dh)),
            "v_cache": _w((lambda *s: torch.randn(*s, dtype=torch.bfloat16) * 0.05)(B, Hkv, Sk, Dh)),
            "wq": _w((lambda *s: torch.randn(*s, dtype=torch.bfloat16) * 0.8)(D, Hq * Dh) * (D ** -0.5)),
            "wo": _w((lambda *s: torch.randn(*s, dtype=torch.bfloat16) * 0.05)(Hq * Dh, D) * ((Hq * Dh) ** -0.5)),
        }
    _A_in = _A_setup()

    def _B_setup():
        B, Sq, D = 8, 1, 448
        Hq, Hkv, Sk, Dh = 16, 8, 4096, 256
        assert Hq % Hkv == 0, (Hq, Hkv)
        return {
            "x": _w((lambda *s: torch.randn(*s, dtype=torch.bfloat16) * 0.8)(B, Sq, D)),
            "k_cache": _w((lambda *s: torch.randn(*s, dtype=torch.bfloat16) * 0.8)(B, Hkv, Sk, Dh)),
            "v_cache": _w((lambda *s: torch.randn(*s, dtype=torch.bfloat16) * 0.05)(B, Hkv, Sk, Dh)),
            "wq": _w((lambda *s: torch.randn(*s, dtype=torch.bfloat16) * 0.8)(D, Hq * Dh) * (D ** -0.5)),
            "wo": _w((lambda *s: torch.randn(*s, dtype=torch.bfloat16) * 0.05)(Hq * Dh, D) * ((Hq * Dh) ** -0.5)),
        }
    _B_in = _B_setup()

    return {
        "A_x": _A_in["x"],
        "A_k_cache": _A_in["k_cache"],
        "A_v_cache": _A_in["v_cache"],
        "A_wq": _A_in["wq"],
        "A_wo": _A_in["wo"],
        "B_x": _B_in["x"],
        "B_k_cache": _B_in["k_cache"],
        "B_v_cache": _B_in["v_cache"],
        "B_wq": _B_in["wq"],
        "B_wo": _B_in["wo"],
    }

def reference(A_x, A_k_cache, A_v_cache, A_wq, A_wo, B_x, B_k_cache, B_v_cache, B_wq, B_wo):
    def _A_ref(x, k_cache, v_cache, wq, wo):
        B, Sq, D = x.shape
        Hq, Dh = 16, 256
        Hkv = k_cache.shape[1]
        rep = Hq // Hkv
        q = (lambda x, *d: x.permute(*d))((x @ wq).reshape(B, Sq, Hq, Dh), 0, 2, 1, 3)
        k = (lambda x, n, axis: torch.repeat_interleave(x, n, dim=axis))(k_cache, rep, axis=1)
        v = (lambda x, n, axis: torch.repeat_interleave(x, n, dim=axis))(v_cache, rep, axis=1)
        scores = torch.einsum("bhqd,bhkd->bhqk", q, k) * (Dh ** -0.5)
        p = _softmax(scores, axis=-1)
        o = torch.einsum("bhqk,bhkd->bhqd", p, v)
        return (lambda x, *d: x.permute(*d))(o, 0, 2, 1, 3).reshape(B, Sq, Hq * Dh) @ wo

    def _B_ref(x, k_cache, v_cache, wq, wo):
        B, Sq, D = x.shape
        Hq, Dh = 16, 256
        Hkv = k_cache.shape[1]
        rep = Hq // Hkv
        q = (lambda x, *d: x.permute(*d))((x @ wq).reshape(B, Sq, Hq, Dh), 0, 2, 1, 3)
        k = (lambda x, n, axis: torch.repeat_interleave(x, n, dim=axis))(k_cache, rep, axis=1)
        v = (lambda x, n, axis: torch.repeat_interleave(x, n, dim=axis))(v_cache, rep, axis=1)
        scores = torch.einsum("bhqd,bhkd->bhqk", q, k) * (Dh ** -0.5)
        p = _softmax(scores, axis=-1)
        o = torch.einsum("bhqk,bhkd->bhqd", p, v)
        return (lambda x, *d: x.permute(*d))(o, 0, 2, 1, 3).reshape(B, Sq, Hq * Dh) @ wo

    a = _A_ref(A_x, A_k_cache, A_v_cache, A_wq, A_wo)
    b = _B_ref(B_x, B_k_cache, B_v_cache, B_wq, B_wo)
    return torch.concatenate([a, b], axis=-1)
```

```python
import sys, json
KN = "concat_heads__gqa_block_cached__gqa_block_cached__decode_kernel"
HEADER = open("concat_heads__gqa_block_cached__gqa_block_cached__decode.s.ref").read().split("; Override launch")[0]

WS_QP = 0x10000
WS_ML = 0x60000
WS_RK = 0x80000
WS_OP = 0x120000
WS_SP = 0x200000
WS_STAMP = 0x600000
L_WQ = 0
L_WO = 28672
L_Q = L_WO + 32768
L_CNT = L_Q + 2048
L_MX = L_CNT + 64
L_SC = L_MX + 2048
L_PART = L_SC + 16384
L_TOTAL = L_PART + 16384

DOC = """; ---------------------------------------------------------------------------------------------
; ---------------------------------------------------------------------------------------------"""

def gen(stamps=False, sleep_q=4, slw=4, lo=5, hi=(6, 7), capp=7, thr=46, mtrig=56, bk=True,
        bits=(17, 16, 9, 13, 12, 18, 11, 15, 19, 10, 20, 14), jrot=(3, 4), awave=1, mid=28, thr2=36, msl=1, sib=None, sibk=False, sibfrom=0, last=None, er=False, btop=31, lateA=None, lcnt=60, lpos=3, na=False, pre="", d2=None, defb=None, defa=None, hal="", lean=False, hloop=2, probe=None, early=0, opa="post", kpipe=False, wcap=0, acap=0, uord=(0,2,1,3,4,6,5,7), tabl=False,
        xm="17 16 13 9 15 12 11^12^15 18 19 10 10^11^12^15^18^19^20 14", bx="12^18 10^12^15^18 10^15 12^15^18 10^11^15 10^11"):
    def M_(z): return 0 if z == "-" else sum(1 << int(y) for y in z.split("^"))
    masks = [M_(z) for z in xm.split()] if xm else [1 << z for z in bits]
    if xm: bits = [int(z) for z in xm.split()[:4]] + xm.split()[4:]
    rows = list(masks); rank = 0
    for bt in range(9, 21):
        pv = next((r for r in rows if r >> bt & 1), None)
        if pv is not None: rows.remove(pv); rows = [r ^ pv if r >> bt & 1 else r for r in rows]; rank += 1
    assert rank == 12 and all(not (z & sum(masks[:4])) for z in masks[4:] + [M_(y) for y in (bx.split() if bx else [])])
    if probe: stamps = True
    D = 4
    WS_SIZE = 0x680000 if stamps else 0x300000
    L = []
    def e(s): L.append("    " + s)
    def lab(s): L.append(s + ":")
    def c(s): L.append("    ; " + s)
    L.append(HEADER.rstrip("\n"))
    L.append(f"; @launch grid=(256,1,1) block=(320,1,1) lds={L_TOTAL}")
    L.append(DOC)
    L.append('.amdgcn_target "amdgcn-amd-amdhsa--gfx950"')
    L.append(".text"); L.append(f".globl {KN}"); L.append(".p2align 8"); L.append(f".type {KN},@function"); lab(KN)
    nst = [0]
    def stamp(i=None):
        if stamps:
            if i is not None: nst[0] = i
            e(f"s_memrealtime s[{72+2*nst[0]}:{73+2*nst[0]}]"); nst[0] += 1
    def rstamp(k):
        if stamps:
            e("s_memrealtime s[52:53]"); e("s_waitcnt lgkmcnt(0)")
            e("s_lshr_b32 s3, s23, 4"); e(f"s_add_u32 s3, s3, {2*k}"); e("s_mov_b32 m0, s3"); e("s_nop 0")
            e("s_movreld_b32 s72, s52"); e("s_movreld_b32 s73, s53")
    stamp(0)
    c("---- pointers first, ids while they travel")
    e("s_load_dwordx16 s[56:71], s[0:1], 0")
    e("s_load_dwordx8 s[32:39], s[0:1], 64")
    e("s_load_dwordx2 s[12:13], s[0:1], 96        ; ws")
    e("s_cmp_ge_u32 s2, 256"); e("s_cbranch_scc1 L_end")
    c("wg -> s40 lid = (b*8+hkv)*4+m, s42 b, s43 hkv, s41 c = b*4+m (member of hand-off group hkv), s44 wave")
    e("v_lshrrev_b32 v1, 6, v0")
    e("s_and_b32 s42, s2, 7"); e("s_lshl_b32 s3, s42, 5"); e("s_lshr_b32 s40, s2, 3"); e("s_add_u32 s40, s40, s3")
    e("v_readfirstlane_b32 s44, v1")
    e("v_and_b32 v0, 63, v0")
    e("s_bfe_u32 s43, s40, 0x30002")
    e("s_and_b32 s3, s40, 3"); e("s_lshl_b32 s41, s42, 2"); e("s_or_b32 s41, s41, s3")
    e("s_cmp_lg_u32 s44, 0"); e("s_cbranch_scc1 L_stream")

    WA = 192
    B = 112
    G = 96
    EP = 10
    def wo_dma(p, vr, cp=0):
        u0 = 8 if "ab"[p] in hal else 0
        if u0: e(f"s_add_u32 s48, s48, {56*896}")
        for u in range(u0, 16):
            if cp and u >= cp: e(f"s_waitcnt vmcnt({cp-1})")
            e(f"s_mov_b32 m0, {L_WO + p*16384 + u*1024}")
            e("s_nop 0") if u == 0 else e(f"s_add_u32 s48, s48, {8*896 if u != 8 else (128-56)*896}")
            e(f"buffer_load_dwordx4 v{vr+(u&3)}, s[28:31], s48 offen nt lds")
    def wo_addr(vr, t0, t1):
        c("projection role: s54 kq = c/7 (head, half of the dims), s55 nc = c%7 (64-column block); members 28..31 have none")
        e("s_mul_i32 s54, s41, 37"); e("s_lshr_b32 s54, s54, 8"); e("s_mul_i32 s3, s54, 7"); e("s_sub_u32 s55, s41, s3")
        c("wo slice: rows hkv*512 + (kq>>1)*256 + (kq&1)*64 (+128 for its second half), lane (l>>3)*896 + (l&7)*16;")
        c("the 32-byte units of a row are stored xor (row>>3)&3 so that the transposing reads are free of bank conflicts")
        e(f"v_lshrrev_b32 v{t0}, 3, v0"); e(f"v_mul_u32_u24 v{t0}, 896, v{t0}"); e(f"v_and_b32 v{t1}, 7, v0"); e(f"v_lshl_add_u32 v{vr}, v{t1}, 4, v{t0}")
        for i in range(1, 4): e(f"v_xor_b32 v{vr+i}, {32*i}, v{vr}")
        e("s_lshl_b32 s48, s43, 3"); e("s_and_b32 s3, s54, 2"); e("s_lshl_b32 s3, s3, 1"); e("s_add_u32 s48, s48, s3")
        e("s_and_b32 s3, s54, 1"); e("s_add_u32 s48, s48, s3")
        e("s_mul_i32 s48, s48, 64*896"); e("s_lshl_b32 s3, s55, 7"); e("s_add_u32 s48, s48, s3")
        e("s_cmp_ge_u32 s41, 28"); e("s_cselect_b32 s30, 0, 3670016"); e("s_mov_b32 s31, 0x20000")
    def wo_read(p):
        for ks in range(4):
            if ks >= 2: e("s_waitcnt lgkmcnt(7)")
            for nt in range(4):
                for hh in range(2):
                    r = WA + ks*16 + nt*4 + hh*2
                    if ks == 1 and nt == 3 and hh == 0: e("s_waitcnt lgkmcnt(12)")
                    e(f"ds_read_b64_tr_b16 v[{r}:{r+1}], v{164+nt} offset:{L_WO + p*16384 + (hh*64 + 32*(ks>>1) + 4*(ks&1))*128}")
        e("s_waitcnt lgkmcnt(0)")
    def issue1():
        for ct in range(2):
            for ks in range(4):
                e(f"buffer_load_dwordx4 v[{B+16*ct+4*ks}:{B+16*ct+4*ks+3}], v20, s[20:23], s58 offen offset:{ct*2048 + ks*64} sc1")
    def st1_setup(p):
        c("stage 1 loads: column j = (b, s) -> member 4b + s (+2 for the second pass)")
        e("v_lshrrev_b32 v22, 1, v2"); e("v_and_b32 v23, 1, v2"); e("v_lshl_add_u32 v20, v22, 2, v23"); e("v_lshlrev_b32 v20, 10, v20")
        e("v_lshl_add_u32 v20, v3, 4, v20")
        e("s_lshl_b32 s58, s43, 15"); e("s_lshl_b32 s3, s54, 8"); e("s_add_u32 s58, s58, s3"); e(f"s_add_u32 s58, s58, {hex(WS_OP + p*0x40000)}")
        c("stage 1 stores: b*8192 + (4s+g)*16 ; s[36:37] = lanes with s = 1")
        e("v_lshl_add_u32 v26, v23, 2, v3"); e("v_lshlrev_b32 v26, 4, v26")
        e("v_lshl_add_u32 v22, v22, 13, v26")
        e("v_cmp_eq_u32 s[36:37], 1, v23")
        e("s_lshl_b32 s59, s55, 16"); e("s_lshl_b32 s3, s43, 2"); e("s_add_u32 s3, s3, s54"); e("s_lshl_b32 s3, s3, 7"); e("s_add_u32 s59, s59, s3")
        e(f"s_add_u32 s59, s59, {hex(WS_SP + p*(7 << 16))}"); e("s_add_u32 s65, s59, 0x1000")
        c("wo tr-read lane address (8r + g)*128 + ((r ^ nt)*4 + cc)*8")
        e("v_lshrrev_b32 v45, 2, v2"); e("v_lshl_add_u32 v44, v45, 3, v3"); e("v_lshlrev_b32 v44, 7, v44"); e("v_lshl_add_u32 v44, v45, 5, v44")
        e("v_and_b32 v45, 3, v0"); e("v_lshl_add_u32 v164, v45, 3, v44")
        for i in range(1, 4): e(f"v_xor_b32 v{164+i}, {32*i}, v164")

    c("================= helper wave (0): q projection, hand-offs, output projection =================")
    e("s_setprio 3")
    c("wq slice: problem m>>1, 32 columns 2b + (m&1) of head pair hkv, all 448 rows; lane (l>>2)*8192 + (l&3)*16")
    e("v_lshrrev_b32 v7, 2, v0"); e("v_lshlrev_b32 v8, 13, v7"); e("v_and_b32 v45, 3, v0"); e("v_lshl_add_u32 v8, v45, 4, v8")
    e("s_and_b32 s3, s41, 1"); e("s_lshl_b32 s46, s42, 1"); e("s_or_b32 s46, s46, s3")
    e("s_lshl_b32 s48, s43, 10"); e("s_lshl_b32 s3, s46, 6"); e("s_add_u32 s48, s48, s3")
    e("s_mov_b32 s26, 3670016"); e("s_mov_b32 s27, 0x20000")
    def setup2b():
        for i in range(4): e(f"v_mov_b32 v{12+i}, -1")
        c("s49 / s50 = own partial-o slots, s51 = counters this member resets (member 0 only)")
        e("s_lshl_b32 s49, s43, 5"); e("s_add_u32 s49, s49, s41"); e("s_lshl_b32 s49, s49, 10")
        e(f"s_add_u32 s49, s49, {hex(WS_OP)}"); e("s_add_u32 s50, s49, 0x40000")
        c("(lane -> slot l>>2, line l&3; the group's own line in the last slot) so that every member's first draw follows a reset it has seen")
        e(f"s_mov_b32 s3, {hex(WS_RK)}"); e("s_cmp_eq_u32 s41, 0"); e("s_cselect_b32 s51, s3, 0x7ff00000")
        e("v_mov_b32 v17, s43"); e("v_cmp_lt_u32 vcc, 59, v0"); e("v_lshlrev_b32 v16, 11, v7"); e("s_nop 0")
        e("v_cndmask_b32 v17, v45, v17, vcc"); e("v_lshl_add_u32 v16, v17, 8, v16")
    def setup2():
        e("s_mov_b32 s10, 7168"); e("s_mov_b32 s11, 0x20000")
        e("v_lshlrev_b32 v4, 4, v0")
        e("v_mov_b32 v9, 0")
        if hloop != 4: setup2b()
        e(f"s_mov_b32 s22, {hex(WS_SIZE)}"); e("s_mov_b32 s23, 0x20000")
    if not lean: setup2()
    def setup3():
        e("v_and_b32 v2, 15, v0"); e("v_lshrrev_b32 v3, 4, v0"); e("v_and_b32 v5, 7, v0")
        e(f"v_mov_b32 v27, {L_CNT}")
        c("x operand: (j&7)*896 + g*16 ; wq tr-read lane address: (8g + r)*64 + cc*8 with r=(l&15)>>2, cc=l&3")
        e("v_mul_u32_u24 v6, 896, v5"); e("v_lshl_add_u32 v6, v3, 4, v6"); e(f"v_add_u32 v6, {L_SC}, v6")
        e("v_lshrrev_b32 v44, 2, v2"); e("v_lshl_add_u32 v44, v3, 3, v44"); e("v_lshlrev_b32 v44, 6, v44")
        e("v_lshl_add_u32 v44, v45, 3, v44")
        c("q store: lane offset (j&7)*2048 + ((j>>3)*4 + g)*16")
        e("v_lshrrev_b32 v45, 3, v2"); e("v_lshl_add_u32 v46, v45, 2, v3"); e("v_lshlrev_b32 v46, 4, v46")
        e("v_lshl_add_u32 v46, v5, 11, v46")
        e("s_lshl_b32 s53, s45, 3"); e("s_add_u32 s53, s53, s43"); e("s_lshl_b32 s53, s53, 14"); e("s_lshl_b32 s3, s46, 7"); e("s_add_u32 s53, s53, s3")
        e(f"s_add_u32 s53, s53, {hex(WS_QP)}")
        e("s_lshl_b32 s52, s43, 3"); e("s_add_u32 s52, s52, s42"); e("s_lshl_b32 s52, s52, 11"); e(f"s_add_u32 s52, s52, {hex(WS_QP)}")
        e("v_cmp_lt_u32 vcc, 7, v2")
    if early: e("s_bfe_u32 s45, s41, 0x10001"); setup3()
    if hloop: e("s_mov_b32 s4, 0x20000"); e("s_movk_i32 s5, 0x400"); e(f"s_movk_i32 s6, {L_WQ + 28*1024}"); e(f"s_movk_i32 s7, {L_WQ + 4096}")
    e(f"s_mov_b32 m0, {L_WQ}")
    e("s_bfe_u32 s45, s41, 0x10001")
    e("s_waitcnt lgkmcnt(0)")
    e("s_cselect_b64 s[24:25], s[32:33], s[62:63]"); e("s_cselect_b64 s[8:9], s[66:67], s[56:57]")
    if probe: e("s_memrealtime s[96:97]")
    XR = 112
    def misc():
        for k in range(7):
            if k & 3 == 0: e(f"s_mov_b32 m0, {L_SC + k*1024}"); e(f"s_mov_b32 s3, {k*1024}")
            e(f"buffer_load_dwordx4 v4, s[8:11], s3 offen offset:{(k&3)*1024} lds")
        e("s_mov_b64 s[20:21], s[12:13]")
        e(f"buffer_load_dwordx2 v[{EP}:{EP+1}], v9, s[20:23], 0 offen sc1")
        if hloop != 4: stores()
    def stores():
        c("mark own partial-o slots as empty (all ones), reset the counters; all acked before q is published")
        e("buffer_store_dwordx4 v[12:15], v4, s[20:23], s49 offen sc1")
        e("buffer_store_dwordx4 v[12:15], v4, s[20:23], s50 offen sc1")
        e("buffer_store_dword v9, v16, s[20:23], s51 offen sc1")
    def wqloop(name, end):
        lab(name)
        e("buffer_load_dwordx4 v8, s[24:27], s48 offen nt lds")
        e("s_add_u32 m0, m0, s5"); e("s_add_u32 s48, s48, s4"); e(f"s_cmp_lg_u32 m0, {end}"); e(f"s_cbranch_scc1 {name}")
    if hloop == 1:
        wqloop("L_wqa", "s6"); misc()
    elif hloop in (2, 4):
        wqloop("L_wqa", "s7"); misc(); e(f"s_mov_b32 m0, {L_WQ + 4096}"); e("s_nop 0"); wqloop("L_wqb", "s6")
    elif hloop == 3:
        wqloop("L_wqa", "s6")
    else:
        for u in range(28):
            if u:
                e(f"s_mov_b32 m0, {L_WQ + u*1024}"); e(f"s_add_u32 s48, s48, {16*8192}")
            e(f"buffer_load_dwordx4 v8, s[24:27], s48 offen nt lds")
            if u == 3:
                if lean: setup2()
                for k in range(7):
                    if k & 3 == 0: e(f"s_mov_b32 m0, {L_SC + k*1024}"); e(f"s_mov_b32 s3, {k*1024}")
                    e(f"buffer_load_dwordx4 v4, s[8:11], s3 offen offset:{(k&3)*1024} lds")
                e("s_mov_b64 s[20:21], s[12:13]")
                e(f"buffer_load_dwordx2 v[{EP}:{EP+1}], v9, s[20:23], 0 offen sc1")
                c("mark own partial-o slots as empty (all ones), reset the counters; all acked before q is published")
                e("buffer_store_dwordx4 v[12:15], v4, s[20:23], s49 offen sc1")
                e("buffer_store_dwordx4 v[12:15], v4, s[20:23], s50 offen sc1")
                e("s_mov_b64 exec, 0x1ffff" if lateA else "s_mov_b64 exec, 0xffff")
                e("buffer_store_dword v9, v16, s[20:23], s51 offen sc1")
                e("s_mov_b64 exec, -1")
    if probe: e("s_memrealtime s[98:99]")
    e("s_barrier")
    if hloop == 3: misc()
    if hloop == 4: setup2b(); stores()
    stamp(1)
    if stamps:
        for i in range(76, 96): e(f"s_mov_b32 s{i}, 0")
    e("s_mov_b64 s[28:29], s[64:65]")
    if not early: setup3()
    e("s_mov_b32 s63, 0x40000")
    for o in ((0, 4, 8, 12, 16, 20, 24) if (sib or lateA) else (0, 4, 8, 12, 16, 24)): e(f"ds_write_b32 v27, v9 offset:{o}")
    e("s_mov_b32 s51, s53")
    QA = 48
    AT = 64
    c("q^T[32 x 8] = wq^T x^T, two k-steps per landed group of four loads")
    for i in range(7):
        if hloop in (1, 3):
            if i in (0, 6): e(f"s_waitcnt vmcnt({3 if i == 0 else 0})")
        elif hloop == 4: e(f"s_waitcnt vmcnt({27 - 4*i})")
        else: e(f"s_waitcnt vmcnt({24 - 4*i})")
        if i == 6: stamp(2)
        for kp in range(2): e(f"ds_read_b128 v[{XR+4*(2*i+kp)}:{XR+4*(2*i+kp)+3}], v6 offset:{(2*i+kp)*64}")
        at = AT + 16*(i & 1)
        for kp in range(2):
            for nt in range(2):
                for hh in range(2):
                    r = at + 8*kp + 4*nt + 2*hh
                    e(f"ds_read_b64_tr_b16 v[{r}:{r+1}], v44 offset:{L_WQ + (32*(2*i+kp) + 4*hh)*64 + nt*32}")
        if i == 0:
            c("tags of this launch = epoch word + constant")
            e(f"v_add_u32 v{EP}, 0x9e3779b9, v{EP}"); e(f"v_add_u32 v{EP+1}, 0x85ebca6b, v{EP+1}")
            for nt in range(2):
                e(f"v_mov_b32 v{G+4*nt+1}, v{EP}"); e(f"v_mov_b32 v{G+4*nt+3}, v{EP+1}")
        e("s_waitcnt lgkmcnt(0)")
        for kp in range(2):
            for nt in range(2):
                d = QA + 8*kp + 4*nt; r = at + 8*kp + 4*nt; x = XR + 4*(2*i+kp)
                cin = "0" if i == 0 else f"v[{d}:{d+3}]"
                e(f"v_mfma_f32_16x16x32_bf16 v[{d}:{d+3}], v[{r}:{r+3}], v[{x}:{x+3}], {cin}")
    e("s_nop 7")
    for i in range(8): e(f"v_add_f32 v{QA+i}, v{QA+i}, v{QA+8+i}")
    for i in range(4): e(f"v_cndmask_b32 v{QA+i}, v{QA+i}, v{QA+4+i}, vcc")
    e(f"v_cvt_pk_bf16_f32 v{G}, v{QA}, v{QA+1}"); e(f"v_cvt_pk_bf16_f32 v{G+2}, v{QA+2}, v{QA+3}")
    if hloop == 4: e("s_waitcnt vmcnt(0)")
    e(f"buffer_store_dwordx4 v[{G}:{G+3}], v46, s[20:23], s51 offen sc1")
    def tagacc(base, first):
        if first: e(f"v_xor_b32 v30, v{base+1}, v{EP}")
        else: e(f"v_bitop3_b32 v30, v{base+1}, v{EP}, v30 bitop3:0xbe")
        e(f"v_bitop3_b32 v30, v{base+3}, v{EP+1}, v30 bitop3:0xbe")
    def retry(lpoll, ldone, slp):
        e(f"s_cbranch_vccz {ldone}")
        e("s_mov_b64 exec, vcc")
        if slp: e(f"s_sleep {slp}")
        e("s_sub_u32 s63, s63, 1"); e("s_cmp_lg_u32 s63, 0"); e(f"s_cbranch_scc1 {lpoll}")
        e("s_mov_b32 s63, 1")
        e("s_mov_b64 exec, -1")
        lab(ldone)
    def ldswait(name, off, sreg, rank=True, sl=None):
        lab(name)
        e(f"s_sleep {slw if sl is None else sl}")
        e(f"ds_read_b32 v30, v27 offset:{off}")
        if rank: e("ds_read_b32 v31, v27 offset:12")
        e("s_waitcnt lgkmcnt(0)")
        e("v_readfirstlane_b32 s3, v30")
        if rank:
            c("a round of tiles finished: its arrival rank among 64 peers decides how many loads the waves keep in flight next")
            e("v_readfirstlane_b32 s4, v31"); e("s_nop 3")
            e("s_cmp_lt_u32 s4, s14"); e(f"s_cbranch_scc1 {name}n")
            e("s_and_b32 s5, s67, 0x300"); e("s_add_u32 s5, s5, s47"); e("s_add_u32 s67, s67, s66")
            e("s_mov_b32 s4, 1"); e("s_atomic_add s4, s[20:21], s5 glc"); e("s_add_u32 s14, s14, 4"); e("s_add_u32 s47, s47, 0x800"); e("s_waitcnt lgkmcnt(0)")
            e(f"s_cmp_ge_u32 s4, {thr}"); e("s_cselect_b32 s4, 1, 0"); e("v_mov_b32 v31, s4"); e("ds_write_b32 v27, v31 offset:24")
            lab(f"{name}n")
        else: e("s_nop 3")
        e(f"s_cmp_lt_u32 s3, {sreg}"); e(f"s_cbranch_scc1 {name}")
    c("addresses for the epilogues (computed while the q columns travel)")
    e(f"v_lshlrev_b32 v47, 3, v0"); e(f"v_add_u32 v47, {L_Q}, v47")
    e(f"v_add_u32 v25, {L_PART}, v4")
    c("partial-o store: h*512 + (8g+e)*16 ; score sweep: tile 8u+e, head h, keys 4g..4g+3 ; (max,sum): store h*16, load g*256 + h*16")
    e("v_bfe_u32 v17, v0, 3, 1")
    e("v_lshl_add_u32 v18, v3, 3, v5"); e("v_lshlrev_b32 v18, 4, v18"); e("v_lshl_add_u32 v18, v17, 9, v18")
    e("v_lshlrev_b32 v16, 7, v5"); e("v_lshl_add_u32 v16, v17, 6, v16"); e("v_lshl_add_u32 v16, v3, 4, v16"); e(f"v_add_u32 v16, {L_SC}, v16")
    e("v_lshlrev_b32 v19, 4, v17")
    e("v_lshl_add_u32 v21, v3, 8, v19")
    e("s_lshl_b32 s57, s40, 8"); e(f"s_add_u32 s57, s57, {hex(WS_ML)}"); e("s_andn2_b32 s56, s57, 0x300")
    wo_addr(168, 28, 29)
    st1_setup(0)
    e(f"ds_write_b64 v27, v[{EP}:{EP+1}] offset:32")
    e("s_mov_b32 s64, 0x3db8aa3b                  ; log2(e)/16")
    e("v_lshlrev_b32 v26, 2, v0"); e(f"v_add_u32 v26, {L_MX}, v26")
    c("peer sets of the depth control: four sets, regrouped every round")
    e(f"s_mov_b32 s47, {hex(WS_RK)}"); e("s_mul_i32 s67, s42, 3"); e("s_add_u32 s67, s67, s40"); e("s_lshl_b32 s67, s67, 8"); e("s_lshl_b32 s66, s42, 8")
    e("s_mov_b32 s38, 0")
    e("s_waitcnt vmcnt(0)")
    c("gather own q, problem A then (once the stream runs) problem B")
    QG = 64
    lab("L_qpoll")
    for u in range(2):
        e(f"buffer_load_dwordx4 v[{QG+4*u}:{QG+4*u+3}], v4, s[20:23], s52 offen offset:{u*1024} sc1")
    e("s_mov_b64 exec, -1")
    e("s_waitcnt vmcnt(0)")
    tagacc(QG, True); tagacc(QG+4, False); e("v_cmp_ne_u32 vcc, 0, v30")
    retry("L_qpoll", "L_qdone", sleep_q)
    for u in range(2):
        e(f"ds_write2_b32 v47, v{QG+4*u}, v{QG+4*u+2} offset0:{u*128} offset1:{u*128+1}")
    e("s_waitcnt lgkmcnt(0)")
    e("s_cmp_lg_u32 s38, 0"); e("s_cbranch_scc1 L_qboth")
    stamp(3)
    e("s_barrier")
    e("s_mov_b32 s38, 1")
    e("s_add_u32 s52, s52, 0x20000"); e("v_add_u32 v47, 1024, v47")
    ldswait("L_wb", 12, "1", rank=False)
    e("s_branch L_qpoll")
    lab("L_qboth")
    c("q columns of all 32 members seen: every member's empty markers are in place")
    e("v_mov_b32 v45, 1")
    e("ds_write_b32 v27, v45 offset:8")
    e("s_mov_b32 s38, 0")
    e("s_mov_b32 s39, 0")
    e("s_mov_b32 s14, 4")
    e("s_mov_b32 s15, 4")
    lab("L_phase")
    ldswait("L_wk", 0, "s15")
    c("---- softmax denominator of this workgroup's keys from the scores in LDS")
    SW = 48
    FW = 148
    for w in range(4): e(f"ds_read_b32 v{FW+2*w}, v26 offset:{w*256}")
    for u in range(8): e(f"ds_read_b128 v[{SW+4*u}:{SW+4*u+3}], v16 offset:{u*1024}")
    e("s_waitcnt lgkmcnt(0)")
    e(f"v_max3_f32 v32, v{FW}, v{FW+2}, v{FW+4}"); e(f"v_max_f32 v32, v32, v{FW+6}")
    for i in range(32): e(f"v_fma_f32 v{SW+i}, v{SW+i}, s64, -v32")
    for i in range(32): e(f"v_exp_f32 v{SW+i}, v{SW+i}")
    for st in (16, 8, 4, 2, 1):
        for i in range(st): e(f"v_add_f32 v{SW+i}, v{SW+i}, v{SW+st+i}")
    e("s_nop 1")
    for mode in ("row_half_mirror", "quad_perm:[1,0,3,2]", "quad_perm:[2,3,0,1]"):
        e(f"v_add_f32_dpp v{SW}, v{SW}, v{SW} {mode} row_mask:0xf bank_mask:0xf"); e("s_nop 1")
    for op in ("v_permlane16_swap_b32", "v_permlane32_swap_b32"):
        e(f"v_mov_b32 v30, v{SW}"); e("s_nop 1"); e(f"{op} v30, v{SW}"); e("s_nop 1"); e(f"v_add_f32 v{SW}, v{SW}, v30")
    e(f"v_mov_b32 v33, v{EP}"); e(f"v_mov_b32 v34, v{SW}"); e(f"v_mov_b32 v35, v{EP+1}")
    e("s_mov_b64 exec, 0x101")
    e("buffer_store_dwordx4 v[32:35], v19, s[20:23], s57 offen sc1")
    e("s_mov_b64 exec, -1")
    c("read the other members' pairs only when they are long complete: A at the end of V(A), B in the last rounds of V(B)")
    e("s_cmp_lg_u32 s38, 0"); e("s_cbranch_scc1 L_wm")
    ldswait("L_wf", 4, "4")
    e("s_branch L_pollm")
    ldswait("L_wm", 12, str(mtrig))
    c("---- the block's four (max, sum) pairs -> per-wave normalisers exp2(m_w - M) / L")
    lab("L_pollm")
    e("buffer_load_dwordx4 v[36:39], v21, s[20:23], s56 offen sc1")
    e("s_mov_b64 exec, -1")
    e("s_waitcnt vmcnt(0)")
    tagacc(36, True); e("v_cmp_ne_u32 vcc, 0, v30")
    retry("L_pollm", "L_donem", 16)
    e("v_mov_b32 v28, v36")
    for op in ("v_permlane16_swap_b32", "v_permlane32_swap_b32"):
        e(f"v_mov_b32 v30, v28"); e("s_nop 1"); e(f"{op} v30, v28"); e("s_nop 1"); e(f"v_max_f32 v28, v28, v30")
    for w in range(4): e(f"v_sub_f32 v{FW+2*w}, v{FW+2*w}, v28")
    for w in range(4): e(f"v_exp_f32 v{FW+2*w}, v{FW+2*w}")
    e("v_sub_f32 v36, v36, v28"); e("v_exp_f32 v36, v36"); e("s_nop 0")
    e("v_mul_f32 v36, v36, v38")
    for op in ("v_permlane16_swap_b32", "v_permlane32_swap_b32"):
        e(f"v_mov_b32 v30, v36"); e("s_nop 1"); e(f"{op} v30, v36"); e("s_nop 1"); e(f"v_add_f32 v36, v36, v30")
    e("v_rcp_f32 v32, v36"); e("s_nop 0")
    for w in range(4): e(f"v_mul_f32 v{FW+2*w}, v{FW+2*w}, v32")
    e("v_add_u32 v16, 8192, v16"); e("v_add_u32 v26, 1024, v26")
    e("s_add_u32 s56, s56, 0x10000"); e("s_add_u32 s57, s57, 0x10000")
    stamp(5)
    e("s_cmp_eq_u32 s38, 0"); e("s_cbranch_scc1 L_merge")
    if mid:
        c("one more rank half-way through the last full round")
        ldswait("L_wh", 16, str(mid), rank=False, sl=2)
        e("s_and_b32 s5, s67, 0x300"); e("s_add_u32 s5, s5, s47")
        e("s_mov_b32 s4, 1"); e("s_atomic_add s4, s[20:21], s5 glc"); e("s_waitcnt lgkmcnt(0)")
        e("s_mov_b32 s53, s4") if (defb or defa) else None
        if defa: e("v_mov_b32 v31, s4"); e("ds_write_b32 v27, v31 offset:40")
        e(f"s_cmp_ge_u32 s4, {thr2}"); e("s_cselect_b32 s4, 1, 0"); e("v_mov_b32 v31, s4"); e("ds_write_b32 v27, v31 offset:24")
    if lateA:
        c("and one before the last step: a late workgroup fetches wo(A) right behind its last tile instead of after the stream")
        ldswait("L_wl", 12, str(lcnt), rank=False, sl=1)
        e("s_and_b32 s5, s67, 0x300"); e(f"s_add_u32 s5, s5, {hex(WS_RK + 16*0x800)}")
        e("s_mov_b32 s4, 1"); e("s_atomic_add s4, s[20:21], s5 glc"); e("s_waitcnt lgkmcnt(0)")
        e(f"s_cmp_ge_u32 s4, {lateA}"); e("s_cselect_b32 s4, 1, 0"); e("v_mov_b32 v31, s4"); e("ds_write_b32 v27, v31 offset:20")
    c("the waves have issued their last tiles: this member's slice of wo(A) follows them")
    if defb: e(f"s_cmp_lt_u32 s53, {defb}"); e("s_cbranch_scc1 L_nob")
    ldswait("L_wd", 12, "64", rank=False, sl=1)
    if "e" in pre:
        e("s_cmp_ge_u32 s41, 28"); e("s_cbranch_scc1 L_npre")
        for r in ("s59", "s65"): e(f"buffer_store_dwordx4 v[12:15], v22, s[20:23], {r} offen sc1")
        lab("L_npre")
    if er:
        e("s_mov_b64 exec, 1"); e("v_mov_b32 v160, 1"); e("buffer_atomic_add v160, off, s[20:23], s47 sc0 sc1"); e("s_mov_b64 exec, -1")
    wo_dma(0, 168)
    if opa == "pre": issue1()
    stamp(4)
    e("s_barrier")
    lab("L_merge")
    stamp(6)
    c("---- merge the four waves' partials, normalise, publish")
    PA = 48
    for w in range(4):
        for hf in range(2):
            e(f"ds_read_b128 v[{PA+8*w+4*hf}:{PA+8*w+4*hf+3}], v25 offset:{w*2048 + hf*1024}")
    for w in range(4):
        e(f"s_waitcnt lgkmcnt({6-2*w})")
        for i in range(4):
            if w == 0: e(f"v_pk_mul_f32 v[{PA+2*i}:{PA+2*i+1}], v[{PA+2*i}:{PA+2*i+1}], v[{FW}:{FW+1}] op_sel_hi:[1,0]")
            else: e(f"v_pk_fma_f32 v[{PA+2*i}:{PA+2*i+1}], v[{PA+8*w+2*i}:{PA+8*w+2*i+1}], v[{FW+2*w}:{FW+2*w+1}], v[{PA+2*i}:{PA+2*i+1}] op_sel_hi:[1,0,1]")
    for d in range(4): e(f"v_cvt_pk_bf16_f32 v{40+d}, v{PA+2*d}, v{PA+2*d+1}")
    for d in range(4): e(f"v_min_u32 v{40+d}, -2, v{40+d}")
    e("buffer_store_dwordx4 v[40:43], v18, s[20:23], s49 offen sc1")
    stamp()
    e("s_cmp_lg_u32 s38, 0"); e("s_cbranch_scc1 L_pubb")
    e("s_mov_b32 s38, 1"); e("s_mov_b32 s49, s50"); e("s_mov_b32 s15, 8"); e("v_add_u32 v25, 8192, v25")
    e("s_branch L_phase")
    lab("L_pubb")
    e("s_cmp_ge_u32 s41, 28"); e("s_cbranch_scc1 L_end")
    if opa == "pre": e("s_waitcnt vmcnt(0)")
    else:
        issue1(); e("s_waitcnt vmcnt(8)")
    wo_read(0)
    e("s_branch L_chk1")
    c("---- stage 1: gather the group's 32 partials for this member's k-slice, multiply with its wo slice (redone if one was missing)")
    lab("L_poll1")
    stamp(3)
    issue1()
    lab("L_chk1")
    Dr = 80
    e("s_mov_b64 exec, -1")
    for i in range(8):
        e(f"s_waitcnt vmcnt({7-i})")
        def mf(nt):
            cin = "0" if i == 0 else f"v[{Dr+4*nt}:{Dr+4*nt+3}]"
            r = WA + (i & 3)*16 + nt*4
            e(f"v_mfma_f32_16x16x32_bf16 v[{Dr+4*nt}:{Dr+4*nt+3}], v[{r}:{r+3}], v[{B+4*i}:{B+4*i+3}], {cin}")
        mf(0)
        if i == 0: e(f"v_max_u32 v30, v{B}, v{B+1}")
        else: e(f"v_max3_u32 v30, v30, v{B+4*i}, v{B+4*i+1}")
        mf(1)
        e(f"v_max3_u32 v30, v30, v{B+4*i+2}, v{B+4*i+3}")
        mf(2); mf(3)
    e("v_cmp_eq_u32 vcc, -1, v30")
    retry("L_poll1", "L_done1", 0)
    stamp(8)
    e("s_nop 3")
    for np_ in range(2):
        d0 = Dr + 8*np_; d1 = d0 + 4
        for i in range(4): e(f"v_cndmask_b32 v{144+i}, v{d1+i}, v{d0+i}, s[36:37]")
        for i in range(4): e(f"v_cndmask_b32 v{d0+i}, v{d0+i}, v{d1+i}, s[36:37]")
        for i in range(4): e(f"v_add_f32_dpp v{d0+i}, v{144+i}, v{d0+i} quad_perm:[1,0,3,2] row_mask:0xf bank_mask:0xf")
        e(f"v_cvt_pk_bf16_f32 v{G+4*np_}, v{d0}, v{d0+1}"); e(f"v_cvt_pk_bf16_f32 v{G+4*np_+2}, v{d0+2}, v{d0+3}")
        e(f"buffer_store_dwordx4 v[{G+4*np_}:{G+4*np_+3}], v22, s[20:23], {('s59', 's65')[np_]} offen sc1")
    stamp()
    if stamps and not probe:
        e("s_cmp_lg_u32 s39, 0"); e("s_cbranch_scc1 L_nota")
        e("s_waitcnt lgkmcnt(0)"); e("v_mov_b32 v4, s94"); e("v_mov_b32 v5, s95"); e("v_mov_b32 v6, s90"); e("v_mov_b32 v7, s91"); e("v_mov_b32 v8, 0")
        e("ds_write_b128 v8, v[4:7] offset:80"); e("s_waitcnt lgkmcnt(0)")
        lab("L_nota")
    e("s_cmp_eq_u32 s39, 0"); e("s_cbranch_scc1 L_end")
    if d2 is None: e("s_waitcnt vmcnt(0)")
    elif d2: e(f"s_sleep {d2}")
    c("---- stage 2: sum 32 k-slices for 32 outputs of one problem")
    lab("L_poll2")
    for u in range(4):
        e(f"buffer_load_dwordx4 v[{B+4*u}:{B+4*u+3}], v4, s[20:23], s61 offen offset:{u*1024} sc1")
    R = 80
    e("s_mov_b64 exec, -1")
    for u in range(4):
        e(f"s_waitcnt vmcnt({3-u})")
        for i in range(4):
            cin = "0" if u == 0 else f"v{R+i}"
            e(f"v_dot2_f32_bf16 v{R+i}, v{B+4*u+2*(i>>1)}, v{158+(i&1)}, {cin}")
        tagacc(B+4*u, u == 0)
    e("v_cmp_ne_u32 vcc, 0, v30")
    retry("L_poll2", "L_done2", 0)
    stamp(10)
    e(f"v_permlane32_swap_b32 v{R}, v{R+1}"); e(f"v_permlane32_swap_b32 v{R+2}, v{R+3}"); e("s_nop 0")
    e(f"v_add_f32 v{R}, v{R}, v{R+1}"); e(f"v_add_f32 v{R+2}, v{R+2}, v{R+3}"); e("s_nop 1")
    e(f"v_permlane16_swap_b32 v{R}, v{R+2}"); e("s_nop 1")
    e(f"v_add_f32 v{R}, v{R}, v{R+2}"); e("s_nop 1")
    e(f"v_add_f32_dpp v{R}, v{R}, v{R} row_ror:8 row_mask:0xf bank_mask:0xf")
    e(f"v_cvt_pk_bf16_f32 v30, v{R}, v{R}")
    e("s_mov_b64 exec, s[34:35]")
    e("buffer_store_short v30, v156, s[16:19], s62 offen")
    c("one workgroup advances the epoch (its result depends on every workgroup, so all have read the old one)")
    e("s_cmp_lg_u32 s60, 1"); e("s_cbranch_scc1 L_noep")
    e("s_mov_b64 exec, 1")
    e(f"buffer_store_dwordx2 v[{EP}:{EP+1}], v9, s[20:23], 0 offen sc1")
    if probe:
        a_, b_, mult = probe
        stamp(11); e("s_waitcnt lgkmcnt(0)")
        def get(col, dst):
            if col < 12 or col >= 24: e(f"s_mov_b32 {dst}, s{72+2*(col if col < 12 else col-12)}")
            else:
                e(f"ds_read_b32 v48, v9 offset:{8*(col-12)}"); e("s_waitcnt lgkmcnt(0)"); e(f"v_readfirstlane_b32 {dst}, v48"); e("s_nop 3")
        get(a_, "s4"); get(b_, "s5")
        e("s_sub_u32 s3, s5, s4"); e(f"s_mul_i32 s3, s3, {mult}"); e("s_min_u32 s3, s3, 100000"); e("s_add_u32 s3, s3, s94")
        lab("L_lin"); e("s_memrealtime s[4:5]"); e("s_waitcnt lgkmcnt(0)"); e("s_sub_u32 s4, s4, s3"); e("s_cmp_lt_i32 s4, 0"); e("s_cbranch_scc1 L_lin")
    lab("L_noep")
    if stamps and not probe:
        e("s_waitcnt vmcnt(0)")
        stamp(11)
        e("s_mov_b64 exec, 1")
        e("s_waitcnt lgkmcnt(0)")
        e("s_mul_i32 s3, s2, 192"); e(f"s_add_u32 s3, s3, {WS_STAMP}")
        for i in range(6):
            for jj in range(4): e(f"v_mov_b32 v{48+jj}, s{72+4*i+jj}")
            e(f"buffer_store_dwordx4 v[48:51], v9, s[20:23], s3 offen offset:{16*i}")
            e("s_nop 1")
        e("s_sleep 8")
        for i in range(6):
            e(f"ds_read_b128 v[{52+4*i}:{55+4*i}], v9 offset:{16*i}"); e("s_waitcnt lgkmcnt(0)")
            e(f"buffer_store_dwordx4 v[{52+4*i}:{55+4*i}], v9, s[20:23], s3 offen offset:{96+16*i}")
    lab("L_end")
    e("s_endpgm")

    L.append(".p2align 6")
    lab("L_stream")
    c("================= streaming waves (1..4) =================")
    ONE, CNTA = 2, 3
    Q, A, ACC, S, P, MK = 4, 20, 28, 36, 40, 56
    M, SCA, T0, T1, T2, QADR, MODE, OFF = 60, 61, 62, 63, 64, 65, 66, 68
    RING = 72
    c("byte offset of a key row inside the 2MB (b,hkv) block = xor of one mask per index bit (an invertible map, tuned for DRAM locality):")
    c(f"key-in-group t -> bits {bits[0]} | {bits[1]}; lane group g -> {bits[2]} | {bits[3]}; wave -> {bits[4]} | {bits[5]}; member -> {bits[6]} | {bits[7]};")
    c(f"step s7 (rotated start) -> {bits[8]} | {bits[9]} | {bits[10]} | {bits[11]}; block index bits flip {' | '.join(bx.split()) if bx else 'nothing'};")
    c("bit 8 = half of the row, bits 4..7 = lane")
    def jaddr():
        J = (lambda k: f"s{80+k}") if tabl else (lambda k: hex(masks[8+k])); op = "s_xor_b32"
        e(f"s_bitcmp1_b32 s7, 0"); e(f"s_cselect_b32 s20, {J(0)}, 0"); e(f"{op} s20, s20, s16")
        for k in range(1, 4):
            e(f"s_bitcmp1_b32 s7, {k}"); e(f"s_cselect_b32 s17, {J(k)}, 0"); e(f"{op} s20, s20, s17")
        e("s_add_u32 s7, s7, 1")
    e("s_sub_u32 s44, s44, 1")
    e("v_and_b32 v4, 15, v0"); e("v_lshrrev_b32 v5, 4, v0")
    e(f"v_and_b32 v6, 1, v5"); e(f"v_lshlrev_b32 v6, {bits[2]}, v6"); e(f"v_lshl_add_u32 v{OFF}, v4, 4, v6")
    e(f"v_lshrrev_b32 v6, 1, v5"); e(f"v_lshl_add_u32 v{OFF}, v6, {bits[3]}, v{OFF}")
    for t in range(1, 4): e(f"v_add_u32 v{OFF+t}, {hex((t&1)*(1<<bits[0]) + (t>>1)*(1<<bits[1]))}, v{OFF}")
    e("s_lshr_b32 s6, s40, 2"); e("s_lshl_b32 s6, s6, 21")
    e(f"s_lshl_b32 s7, s40, {jrot[0]}"); e(f"s_lshr_b32 s3, s40, {jrot[1]}"); e("s_add_u32 s7, s7, s3")
    e("s_mov_b32 s16, 0")
    for reg, k, mk in [("s44", 0, masks[4]), ("s44", 1, masks[5]), ("s40", 0, masks[6]), ("s40", 1, masks[7])] + [("s40", 2+k, M_(z)) for k, z in enumerate(bx.split() if bx else [])]:
        if mk: e(f"s_bitcmp1_b32 {reg}, {k}"); e(f"s_cselect_b32 s3, {hex(mk)}, 0"); e("s_xor_b32 s16, s16, s3")
    jaddr()
    e("s_mov_b32 s14, 0x200000"); e("s_mov_b32 s15, 0x20000")
    e("s_waitcnt lgkmcnt(0)")
    e("s_mov_b64 s[66:67], s[12:13]")
    e("s_add_u32 s12, s58, s6"); e("s_addc_u32 s13, s59, 0")
    if tabl:
        e("s_load_dwordx16 s[72:87], s[38:39], 0"); e("s_load_dwordx8 s[88:95], s[38:39], 64"); e("s_waitcnt lgkmcnt(0)")
        e("s_lshr_b32 s4, s40, 2"); e("s_mul_i32 s5, s4, s86"); e("s_add_u32 s5, s5, s40"); e("s_and_b32 s5, s5, 3")
        e("s_mul_i32 s7, s5, s84"); e("s_mul_i32 s3, s4, s85"); e("s_lshr_b32 s3, s3, 2"); e("s_add_u32 s7, s7, s3")
        e("s_mov_b32 s16, 0")
        for reg, k, sr in (("s44", 0, 76), ("s44", 1, 77), ("s5", 0, 78), ("s5", 1, 79)):
            e(f"s_bitcmp1_b32 {reg}, {k}"); e(f"s_cselect_b32 s3, s{sr}, 0"); e("s_xor_b32 s16, s16, s3")
        for k in range(6):
            e(f"s_bitcmp1_b32 s4, {k}"); e(f"s_cselect_b32 s3, s{88+k}, 0"); e("s_xor_b32 s16, s16, s3")
        e("s_mul_i32 s3, s44, s87"); e("s_add_u32 s7, s7, s3")
        jaddr()
        e("v_bfe_u32 v6, v0, 4, 1"); e("v_mul_lo_u32 v6, v6, s74"); e("v_lshrrev_b32 v7, 5, v0"); e("v_mul_lo_u32 v7, v7, s75"); e("v_add_u32 v6, v6, v7")
        e("v_and_b32 v7, 15, v0"); e(f"v_lshl_add_u32 v{OFF}, v7, 4, v6")
        e(f"v_add_u32 v{OFF+1}, s72, v{OFF}"); e(f"v_add_u32 v{OFF+2}, s73, v{OFF}"); e(f"v_add_u32 v{OFF+3}, s73, v{OFF+1}")
    nlab = [0]
    def ring(slot): return RING + slot*32
    def load1(slot, u, pro=False, lo=lo, hi=hi):
        uu = uord[u]; r = ring(slot) + 4*uu
        if not pro:
            nlab[0] += 1
            e(f"s_waitcnt vmcnt({hi[u % len(hi)]-1})"); e(f"s_cbranch_vccnz L_w{nlab[0]}"); e(f"s_waitcnt vmcnt({lo-1})"); lab(f"L_w{nlab[0]}")
        elif slot*8 + u >= capp: e(f"s_waitcnt vmcnt({capp-1})")
        e(f"buffer_load_dwordx4 v[{r}:{r+3}], v{OFF+(uu>>1)}, s[12:15], s20 offen offset:{(uu&1)*256} nt")
        if u == 7: jaddr()
    if probe: e("s_memrealtime s[92:93]")
    e("s_barrier                                  ; A")
    if probe: e("s_memrealtime s[94:95]")
    for sl in range(D):
        for u in range(8):
            if sl*8 + u == capp:
                c("constants (while the first loads fly)")
                if stamps:
                    for i in range(72, 92 if probe else 96): e(f"s_mov_b32 s{i}, 0")
                for r, q in zip((58, 60, 62), (60, 68, 70)):
                    e(f"s_add_u32 s{r}, s{q}, s6"); e(f"s_addc_u32 s{r+1}, s{q+1}, 0")
                e("s_mov_b64 s[28:29], s[34:35]")
                e("s_lshl_b32 s47, s43, 8"); e(f"s_add_u32 s47, s47, {hex(WS_RK + 15*0x800)}")
                e(f"v_lshlrev_b32 v{QADR}, 4, v4")
                e("v_bfe_u32 v6, v0, 3, 1"); e("v_lshlrev_b32 v6, 6, v6"); e(f"v_lshl_add_u32 v{SCA}, v5, 4, v6")
                e("s_lshl_b32 s3, s44, 7"); e(f"s_add_u32 s3, s3, {L_SC}"); e(f"v_add_u32 v{SCA}, s3, v{SCA}")
                c("lane e = l&7 keeps element e of the 8-wide B operand")
                e("v_and_b32 v4, 7, v0"); e("v_and_b32 v5, 1, v4"); e("v_lshlrev_b32 v5, 4, v5")
                e("v_mov_b32 v6, 0xffff"); e("v_lshlrev_b32 v6, v5, v6"); e("v_lshrrev_b32 v4, 1, v4")
                for d in range(4):
                    e(f"v_cmp_eq_u32 vcc, {d}, v4"); e("s_nop 1"); e(f"v_cndmask_b32 v{MK+d}, 0, v6, vcc")
                e(f"v_mov_b32 v{ONE}, 1"); e(f"v_mov_b32 v{CNTA}, {L_CNT}")
                e("s_mov_b32 s22, 0x3db8aa3b                  ; log2(e)/16")
                e("s_mov_b32 s18, 0x01010101"); e("s_mov_b32 s19, 0x01010101")
                e("s_mov_b32 s23, 64                          ; 64 * (pass + 1)")
                e("s_lshl_b32 s50, s44, 8"); e(f"s_add_u32 s50, s50, {L_MX}")
                e("s_lshl_b32 s51, s44, 11"); e(f"s_add_u32 s51, s51, {L_PART}")
                wo_addr(248, 7, 8)
                for p in range(2):
                    if "ab"[p] not in hal: continue
                    c("first half of the wo slice now (two loads per wave), the rest at the end")
                    if p: e("s_mov_b64 s[8:9], s[34:35]"); e("s_mov_b32 s10, s30"); e("s_mov_b32 s11, 0x20000")
                    e("s_and_b32 s3, s44, 1"); e("s_lshl_b32 s3, s3, 6"); e("v_xor_b32 v7, s3, v248"); e("v_xor_b32 v8, 32, v7")
                    e("s_mul_i32 s4, s44, 2*7168"); e("s_add_u32 s4, s4, s48"); e("s_lshl_b32 s3, s44, 11"); e(f"s_add_u32 s3, s3, {L_WO + p*16384}")
                    for i in range(2):
                        e("s_mov_b32 m0, s3"); e("s_add_u32 s3, s3, 1024")
                        e(f"buffer_load_dwordx4 v{7+i}, {('s[28:31]', 's[8:11]')[p]}, s4 offen nt lds"); e("s_add_u32 s4, s4, 7168")
            load1(sl, u, True)
    stamp(0)
    e("s_barrier                                  ; C")
    stamp()
    e("s_mov_b64 vcc, 0")
    if sib: e(f"s_mov_b32 s45, {sib - 4}"); e(f"s_mov_b32 s46, {0 if sibfrom else 1}")
    lab("L_newp")
    for cc in range(4): e(f"ds_read_b128 v[{Q+4*cc}:{Q+4*cc+3}], v{QADR} offset:{L_Q + cc*256}")
    e(f"v_mov_b32 v{M}, 0xff800000")
    for i2 in range(8): e(f"v_mov_b32 v{ACC+i2}, 0")
    e(f"v_add_u32 v{QADR}, 1024, v{QADR}")
    e(f"v_mov_b32 v{T2}, v{SCA}")
    e("s_mov_b32 s21, 4")
    e("s_waitcnt lgkmcnt(0)")
    def signal(off):
        e("s_mov_b64 exec, 1"); e(f"ds_add_u32 v{CNTA}, v{ONE} offset:{off}"); e("s_mov_b64 exec, -1")
    def weave(work, slot, nxt, caps=None):
        n = len(work); k = 0
        for u in range(8):
            if slot is not None:
                if u == 0 and nxt:
                    c("from the second step of the last round the refills belong to the next buffer")
                    e("s_cmp_eq_u32 s21, 1"); e(f"s_cselect_b64 s[12:13], {nxt}, s[12:13]")
                if caps: load1(slot, u, lo=caps[0], hi=[caps[1]])
                else: load1(slot, u)
            hi_ = (u+1)*n//8
            while k < hi_:
                x = work[k]; k += 1
                for y in (x if isinstance(x, list) else [x]): e(y)
    SIBA = ["s_mov_b64 exec, 1", f"ds_add_rtn_u32 v1, v{CNTA}, v{ONE} offset:20", "s_mov_b64 exec, -1"]
    SIBB = ["v_readfirstlane_b32 s3, v1", "s_add_u32 s45, s45, 4", "s_nop 2", "s_cmp_ge_i32 s3, s45", "s_cselect_b32 s3, s46, 0", "s_or_b32 vcc_lo, vcc_lo, s3"]
    def kwork(sl):
        k = ring(sl); W = []
        W.append([f"ds_read_b32 v{MODE}, v{CNTA} offset:24"] + (SIBA if sib and sibk else []))
        for i in range(8):
            for t in range(4):
                for h in range(2):
                    kr = k + t*8 + i; qr = Q + h*8 + i; ar = A + 2*t + h
                    W.append(f"v_dot2_f32_bf16 v{ar}, v{kr}, v{qr}, 0" if i == 0 else f"v_dot2c_f32_bf16 v{ar}, v{kr}, v{qr}")
        W.insert(12 if sib and sibk else len(W), ["s_waitcnt lgkmcnt(0)", f"v_cmp_ne_u32 vcc, 0, v{MODE}"] + (SIBB if sib and sibk else []))
        for t in range(4): W.append(f"v_add_f32_dpp v{S+t}, v{A+2*t}, v{A+2*t} row_ror:8 row_mask:0xf bank_mask:0x3")
        for t in range(4): W.append(f"v_add_f32_dpp v{S+t}, v{A+2*t+1}, v{A+2*t+1} row_ror:8 row_mask:0xf bank_mask:0xc")
        for mode in ("row_half_mirror", "quad_perm:[1,0,3,2]", "quad_perm:[2,3,0,1]"):
            for t in range(4): W.append(f"v_add_f32_dpp v{S+t}, v{S+t}, v{S+t} {mode} row_mask:0xf bank_mask:0xf")
        W.append(f"v_max3_f32 v{M}, v{M}, v{S}, v{S+1}"); W.append(f"v_max3_f32 v{M}, v{M}, v{S+2}, v{S+3}")
        W.append(["s_mov_b64 exec, s[18:19]", f"ds_write_b128 v{T2}, v[{S}:{S+3}] offset:{sl*512}", "s_mov_b64 exec, -1"])
        return W
    def vwork(sl, waits=None):
        v = ring(sl); W = []
        adm = waits is None
        W.append([f"ds_read_b128 v[{S}:{S+3}], v{T2} offset:{sl*512}"] + ([f"ds_read_b32 v{MODE}, v{CNTA} offset:24"] + (SIBA if sib else []) if adm else []))
        W += [[]]*4 if adm else []
        W.append(["s_waitcnt lgkmcnt(0)"] + ([f"v_cmp_ne_u32 vcc, 0, v{MODE}"] + (SIBB if sib else []) if adm else []))
        for t in range(4): W.append(f"v_fma_f32 v{S+t}, v{S+t}, s22, -v{M}")
        for t in range(4): W.append(f"v_exp_f32 v{S+t}, v{S+t}")
        W.append("s_nop 0")
        for t in range(4): W.append(f"v_cvt_pk_bf16_f32 v{S+t}, v{S+t}, v{S+t}")
        for t in range(4):
            for d in range(4): W.append(f"v_and_b32 v{P+4*t+d}, v{S+t}, v{MK+d}")
        for t in range(4):
            if waits is not None and waits[t] is not None: W.append(f"s_waitcnt vmcnt({waits[t]})")
            for hf in range(2):
                r = v + t*8 + hf*4
                W.append(f"v_mfma_f32_16x16x32_bf16 v[{ACC+4*hf}:{ACC+4*hf+3}], v[{r}:{r+3}], v[{P+4*t}:{P+4*t+3}], v[{ACC+4*hf}:{ACC+4*hf+3}]")
        return W
    e("s_cmp_lg_u32 s23, 64"); e("s_cbranch_scc1 L_k0")
    c("first tile: its refill was fetched while q was on its way")
    weave(kwork(0), None, None)
    e("s_branch L_k1")
    c("---- K tiles: scores -> LDS, running max; step j computes tile j and fetches tile j+3 into the slot freed before")
    for sl in range(D):
        lab(f"L_k{sl}")
        weave(kwork(sl), (sl+D-1) % D, "s[58:59]" if sl == 1 else None)
    signal(12)
    e(f"v_add_u32 v{T2}, 2048, v{T2}")
    if probe:
        e("s_add_u32 s3, s21, s23"); e("s_cmp_lg_u32 s3, 68"); e("s_cbranch_scc1 L_pk1"); e("s_memrealtime s[78:79]"); lab("L_pk1")
        e("s_cmp_lg_u32 s3, 67"); e("s_cbranch_scc1 L_pk2"); e("s_memrealtime s[86:87]"); lab("L_pk2")
    e("s_sub_u32 s21, s21, 1"); e("s_cmp_lg_u32 s21, 0"); e("s_cbranch_scc1 L_k0")
    c("true max over this wave's keys; tell the helper that the scores are complete")
    e(f"v_mov_b32 v{T1}, v{M}"); e(f"v_lshl_add_u32 v{T0}, v0, 2, s50"); e(f"v_mov_b32 v{T2}, v{SCA}")
    e(f"v_permlane16_swap_b32 v{T1}, v{M}"); e("s_nop 1")
    e(f"v_max_f32 v{M}, v{M}, v{T1}")
    e(f"v_mov_b32 v{T1}, v{M}"); e("s_nop 1")
    e(f"v_permlane32_swap_b32 v{T1}, v{M}"); e("s_nop 1")
    e(f"v_max_f32 v{M}, v{M}, v{T1}")
    e(f"v_mul_f32 v{M}, s22, v{M}")
    e(f"ds_write_b32 v{T0}, v{M}")
    signal(0)
    rstamp(0)
    e("s_add_u32 s23, s23, 64")
    e("s_mov_b32 s21, 4")
    c("---- V tiles: p = exp2(s*c - max), acc += p V")
    lab("L_v")
    if sib and sibfrom: e("s_sub_u32 s3, s23, s21"); e(f"s_cmp_ge_u32 s3, {256 - sibfrom}"); e("s_cselect_b32 s46, 1, 0")
    if last: e("s_add_u32 s3, s21, s23"); e("s_cmp_eq_u32 s3, 257"); e("s_cbranch_scc1 L_last")
    weave(vwork(0), D-1, None)
    if not last: e("s_add_u32 s3, s21, s23"); e("s_cmp_eq_u32 s3, 257"); e("s_cbranch_scc1 L_drain")
    for sl in range(1, D):
        weave(vwork(sl), (sl+D-1) % D, "s[60:61]" if sl == 1 else None)
        if mid and sl == msl: signal(16)
    signal(12)
    e(f"v_add_u32 v{T2}, 2048, v{T2}")
    if probe:
        e("s_add_u32 s3, s21, s23"); e("s_cmp_lg_u32 s3, 132"); e("s_cbranch_scc1 L_pv1"); e("s_memrealtime s[82:83]"); lab("L_pv1")
    e("s_sub_u32 s21, s21, 1"); e("s_cmp_lg_u32 s21, 0"); e("s_cbranch_scc1 L_v")
    c("problem A done: hand the partial to the helper, switch to B")
    e(f"v_lshl_add_u32 v{T0}, v0, 4, s51"); e("s_mov_b32 s5, 0x400000")
    e("s_mov_b64 s[58:59], s[62:63]")
    e(f"v_add_u32 v{SCA}, 8192, v{SCA}"); e("s_add_u32 s50, s50, 1024"); e("s_add_u32 s51, s51, 8192")
    e(f"ds_write_b128 v{T0}, v[{ACC}:{ACC+3}]")
    e(f"ds_write_b128 v{T0}, v[{ACC+4}:{ACC+7}] offset:1024")
    signal(4)
    rstamp(0)
    e("s_add_u32 s23, s23, 64")
    lab("L_wq")
    e(f"ds_read_b32 v{T0}, v{CNTA} offset:8")
    e("s_waitcnt lgkmcnt(0)")
    e(f"v_readfirstlane_b32 s3, v{T0}"); e("s_nop 3")
    e("s_cmp_lg_u32 s3, 0"); e("s_cbranch_scc1 L_newp")
    e("s_sleep 2"); e("s_sub_u32 s5, s5, 1"); e("s_cmp_lg_u32 s5, 0"); e("s_cbranch_scc1 L_wq")
    e("s_branch L_newp")
    if last:
        lab("L_last")
        weave(vwork(0), D-1, None, caps=last)
    lab("L_drain")
    c("all loads issued: the last three tiles")
    signal(12)
    e(f"v_lshl_add_u32 v{T0}, v0, 4, s51")
    lw = [7 - max(list(uord).index(x) for x in range(2*t+2)) for t in range(4)]
    waits = {1: [16, None, None, None], 2: [8, None, None, None], 3: lw}
    if lateA: e("s_mov_b32 s45, 0")
    for sl in range(1, 4):
        if lateA and sl == lpos:
            e(f"s_cmp_lg_u32 s44, {awave}"); e("s_cbranch_scc1 L_dr1")
            e(f"ds_read_b32 v{T1}, v{CNTA} offset:20"); e("s_waitcnt lgkmcnt(0)"); e(f"v_readfirstlane_b32 s45, v{T1}"); e("s_nop 3")
            e("s_cmp_eq_u32 s45, 0"); e("s_cbranch_scc1 L_dr1")
            wo_dma(0, 248)
            for s2 in range(sl, 4): weave(vwork(s2, [None if x is None else x + 16 for x in waits[s2]]), None, None)
            e("s_branch L_dr2")
            lab("L_dr1")
        weave(vwork(sl, waits[sl]), None, None)
    if lateA: lab("L_dr2")
    e("s_nop 6")
    e(f"ds_write_b128 v{T0}, v[{ACC}:{ACC+3}]")
    e(f"ds_write_b128 v{T0}, v[{ACC+4}:{ACC+7}] offset:1024")
    e("s_waitcnt lgkmcnt(0)")
    rstamp(0)
    e("s_barrier                                  ; D")
    rstamp(1)
    if stamps:
        e("s_cmp_lg_u32 s44, 0"); e("s_cbranch_scc1 L_nost")
        e("s_waitcnt lgkmcnt(0)")
        e("s_mov_b64 exec, 1"); e("v_mov_b32 v1, 0")
        for i in range(6):
            for jj in range(4): e(f"v_mov_b32 v{4+4*i+jj}, s{72+4*i+jj}")
            e(f"ds_write_b128 v1, v[{4+4*i}:{7+4*i}] offset:{16*i}")
        lab("L_nost")
    e(f"s_cmp_lg_u32 s44, {awave}"); e("s_cbranch_scc1 L_send")
    c("---- this wave now projects problem B (same code and registers as the helper uses for A) and runs stage 2")
    e("s_mov_b64 s[20:21], s[66:67]"); e(f"s_mov_b32 s22, {hex(WS_SIZE)}"); e("s_mov_b32 s23, 0x20000")
    e("s_mov_b32 s46, 1"); e("s_atomic_add s46, s[20:21], s47 glc")
    e("s_cmp_ge_u32 s41, 28"); e("s_cbranch_scc1 L_send")
    wo_dma(1, 248)
    e(f"ds_read_b64 v[{EP}:{EP+1}], v{CNTA} offset:32")
    e("s_mov_b64 s[16:17], s[36:37]"); e("s_mov_b32 s18, 14336"); e("s_mov_b32 s19, 0x20000")
    e("v_and_b32 v2, 15, v0"); e("v_lshrrev_b32 v3, 4, v0"); e("v_and_b32 v5, 7, v0"); e("v_lshlrev_b32 v4, 4, v0"); e("v_mov_b32 v9, 0")
    st1_setup(1)
    c("stage-2 task s60 = hkv*28 + c: problem s60&1, block s60>>1 = (nc*8+b)*2+np")
    e("s_mul_i32 s60, s43, 28"); e("s_add_u32 s60, s60, s41")
    e("s_and_b32 s4, s60, 1"); e("s_lshr_b32 s5, s60, 1"); e("s_mul_i32 s61, s4, 112"); e("s_add_u32 s61, s61, s5")
    e("s_lshl_b32 s61, s61, 12"); e(f"s_add_u32 s61, s61, {hex(WS_SP)}")
    c("out offset: b*1792 + p*896 + nc*128 + np*64 ; lane (row, e) ends up with output 4e + (row>>1) + 2(row&1)")
    e("s_bfe_u32 s3, s5, 0x30001"); e("s_mul_i32 s62, s3, 1792"); e("s_mul_i32 s3, s4, 896"); e("s_add_u32 s62, s62, s3")
    e("s_lshr_b32 s3, s5, 4"); e("s_lshl_b32 s3, s3, 7"); e("s_add_u32 s62, s62, s3")
    e("s_and_b32 s3, s5, 1"); e("s_lshl_b32 s3, s3, 6"); e("s_add_u32 s62, s62, s3")
    e("v_lshrrev_b32 v156, 1, v3"); e("v_and_b32 v157, 1, v3"); e("v_lshl_add_u32 v156, v157, 1, v156"); e("v_lshl_add_u32 v156, v5, 2, v156"); e("v_lshlrev_b32 v156, 1, v156")
    e("v_mov_b32 v158, 0x3f80                     ; bf16 (1,0)"); e("v_mov_b32 v159, 0x3f800000                 ; bf16 (0,1)")
    e("s_mov_b32 s34, 0x00ff00ff"); e("s_mov_b32 s35, 0x00ff00ff")
    e("s_mov_b32 s39, 1"); e("s_mov_b32 s63, 0x40000")
    e("s_waitcnt lgkmcnt(0)")
    for i in range(2): e(f"v_mov_b32 v{G+4*i+1}, v{EP}"); e(f"v_mov_b32 v{G+4*i+3}, v{EP+1}")
    c("polling back-off: the more members are still missing the later the first look (reads ahead of the writes slow the hand-off)")
    lab("L_bk")
    e(f"s_cmp_ge_u32 s46, {btop}"); e("s_cbranch_scc1 L_go")
    e("s_sleep 1"); e("s_add_u32 s46, s46, 1"); e("s_branch L_bk")
    lab("L_go")
    issue1()
    e("s_waitcnt vmcnt(8)")
    wo_read(1)
    e("s_branch L_chk1")
    lab("L_send")
    e("s_endpgm")
    L.append('.section .rodata,"a"'); L.append(".p2align 6"); L.append(f".amdhsa_kernel {KN}")
    L.append("  .amdhsa_next_free_vgpr 256"); L.append(f"  .amdhsa_next_free_sgpr {100 if (stamps or tabl) else 72}"); L.append("  .amdhsa_accum_offset 256")
    L.append("  .amdhsa_group_segment_fixed_size 0"); L.append("  .amdhsa_kernarg_size 104"); L.append("  .amdhsa_user_sgpr_count 2")
    L.append("  .amdhsa_user_sgpr_kernarg_segment_ptr 1"); L.append("  .amdhsa_system_sgpr_workgroup_id_x 1")
    L.append("  .amdhsa_float_denorm_mode_32 3")
    L.append(".end_amdhsa_kernel")
    return "\n".join(x for x in L if x is not None) + "\n"

if __name__ == "__main__":
    cfgs = json.loads(sys.argv[1])
    names = []
    for name, kw in cfgs.items():
        open(f"Y_{name}.s", "w").write(gen(**kw))
        names.append(f"Y_{name}.s")
    print(", ".join(f'"work/{n}"' for n in names)); print(" ".join(names))
```
